```python
import torch

def _softmax(x, axis=-1):
    return torch.softmax(x, dim=axis)
def _gelu(x):
    return torch.nn.functional.gelu(x, approximate="tanh")
def _silu(x):
    return torch.nn.functional.silu(x)
def _sigmoid(x):
    return torch.sigmoid(x)
def _layernorm(x, axis=-1, eps=1e-5):
    m = x.mean(dim=axis, keepdim=True)
    v = x.var(dim=axis, keepdim=True, unbiased=False)
    return (x - m) / torch.sqrt(v + eps)
def _scatter_add(tgt, idx, src, axis=0):
    return tgt.clone().index_add_(axis, idx, src)
def _segment_sum(src, seg, n):
    out = torch.zeros((n,) + src.shape[1:], dtype=src.dtype)
    return out.index_add_(0, seg, src)
def _pad(x, pw):
    flat = tuple(v for pair in reversed(pw) for v in pair)
    return torch.nn.functional.pad(x, flat)

kernel_name = 'standalone__deepnorm__sampling'

def setup_inputs():

    _w = (lambda a: (lambda t: t.to(torch.bfloat16) if t.is_floating_point() else t)(torch.as_tensor(a)))
    B, S, D = 1024, 4, 1024
    return {
        "x": _w((lambda *s: torch.randn(*s, dtype=torch.bfloat16) * 0.05)(B, S, D)),
        "f": _w((lambda *s: torch.randn(*s, dtype=torch.bfloat16) * 0.05)(B, S, D)),
        "g": _w((lambda *s: torch.randn(*s, dtype=torch.bfloat16) * 0.05)(D) + 1.0),
        "b": _w((lambda *s: torch.randn(*s, dtype=torch.bfloat16) * 0.4)(D)),
        "alpha": _w(float(2.0)),
    }

def reference(x, f, g, b, alpha):
    return _layernorm(alpha * x + f, axis=-1) * g + b
```

```python
import sys, argparse

HEADER = """; Kernarg layout for this problem (64 bytes, ptrs only, base s[0:1]):
"""

def gen(R=1, W=4, ldflag="", stflag="", gbflag=""):
    NROWS = 4096
    nwg = NROWS // (R * W)
    L = []
    e = L.append
    name = "standalone__deepnorm__sampling_kernel"
    out = HEADER + f"; @launch grid=({nwg},1,1) block=({64*W},1,1) lds=0\n"
    out += f""".amdgcn_target "amdgcn-amd-amdhsa--gfx950"
.text
.globl {name}
.p2align 8
.type {name},@function
{name}:
"""
    vOff, vGB = 1, 2
    base = 4
    X = [base + 16*r for r in range(R)]
    F = [x + 8 for x in X]
    G = base + 16*R
    B = G + 8
    GF = B + 8
    BF = GF + 16
    H = BF + 16
    T = H + 16
    nv = T + 4
    sMask, sAl, sM, sR = 16, 18, 20, 22
    e("s_load_dwordx8 s[4:11], s[0:1], 0")
    e("s_load_dwordx4 s[12:15], s[0:1], 32")
    e(f"s_cmp_ge_u32 s2, {nwg}")
    e("s_cbranch_scc1 L_end")
    import math
    rb = 2048 * R
    if W > 1:
        e(f"v_and_b32 v{vGB}, 63, v0")
        e(f"v_lshlrev_b32 v{vGB}, 4, v{vGB}")
        e(f"v_lshrrev_b32 v{vOff}, 6, v0")
        e(f"v_lshl_add_u32 v{vOff}, v{vOff}, {int(math.log2(rb))}, v{vGB}")
    else:
        e(f"v_lshlrev_b32 v{vGB}, 4, v0")
        e(f"v_mov_b32 v{vOff}, v{vGB}")
    e(f"v_lshl_add_u32 v{vOff}, s2, {int(math.log2(rb*W))}, v{vOff}")
    bias = 0
    if R > 2:
        bias = 4096
        e(f"v_add_u32 v{vOff}, {bias}, v{vOff}")
    assert R <= 4
    e(f"s_mov_b32 s{sMask}, 0xffff0000")
    e("s_waitcnt lgkmcnt(0)")
    e(f"s_load_dword s{sAl}, s[12:13], 0")
    nld = 0
    for c in range(2):
        e(f"global_load_dwordx4 v[{G+4*c}:{G+4*c+3}], v{vGB}, s[8:9] offset:{1024*c} {gbflag}")
        e(f"global_load_dwordx4 v[{B+4*c}:{B+4*c+3}], v{vGB}, s[10:11] offset:{1024*c} {gbflag}")
    for r in range(R):
        for c in range(2):
            o = 2048*r + 1024*c - bias
            e(f"global_load_dwordx4 v[{X[r]+4*c}:{X[r]+4*c+3}], v{vOff}, s[4:5] offset:{o} {ldflag}")
            e(f"global_load_dwordx4 v[{F[r]+4*c}:{F[r]+4*c+3}], v{vOff}, s[6:7] offset:{o} {ldflag}")
    e(f"s_waitcnt vmcnt({4*R}) lgkmcnt(0)")
    e(f"s_lshl_b32 s{sAl}, s{sAl}, 16")
    for i in range(8):
        e(f"v_lshlrev_b32 v{GF+2*i}, 16, v{G+i}")
        e(f"v_and_b32 v{GF+2*i+1}, s{sMask}, v{G+i}")
    for i in range(8):
        e(f"v_lshlrev_b32 v{BF+2*i}, 16, v{B+i}")
        e(f"v_and_b32 v{BF+2*i+1}, s{sMask}, v{B+i}")

    def wave_reduce(v, sdst):
        e("s_nop 1")
        e(f"v_add_f32_dpp v{v}, v{v}, v{v} quad_perm:[1,0,3,2] row_mask:0xf bank_mask:0xf")
        e("s_nop 1")
        e(f"v_add_f32_dpp v{v}, v{v}, v{v} quad_perm:[2,3,0,1] row_mask:0xf bank_mask:0xf")
        e("s_nop 1")
        e(f"v_add_f32_dpp v{v}, v{v}, v{v} row_half_mirror row_mask:0xf bank_mask:0xf")
        e("s_nop 1")
        e(f"v_add_f32_dpp v{v}, v{v}, v{v} row_mirror row_mask:0xf bank_mask:0xf")
        e("s_nop 1")
        e(f"v_add_f32_dpp v{v}, v{v}, v{v} row_bcast:15 row_mask:0xa bank_mask:0xf")
        e("s_nop 1")
        e(f"v_add_f32_dpp v{v}, v{v}, v{v} row_bcast:31 row_mask:0xc bank_mask:0xf")
        e("s_nop 0")
        e(f"v_readlane_b32 s{sdst}, v{v}, 63")
        e("s_nop 1")

    nstores = 0
    for r in range(R):
        for c in range(2):
            rem = 4*(R-1-r) + (2 if c == 0 else 0) + nstores
            e(f"s_waitcnt vmcnt({rem})")
            for i in range(4*c, 4*c+4):
                e(f"v_lshlrev_b32 v{T}, 16, v{X[r]+i}")
                e(f"v_and_b32 v{T+1}, s{sMask}, v{X[r]+i}")
                e(f"v_lshlrev_b32 v{H+2*i}, 16, v{F[r]+i}")
                e(f"v_and_b32 v{H+2*i+1}, s{sMask}, v{F[r]+i}")
                e(f"v_pk_fma_f32 v[{H+2*i}:{H+2*i+1}], v[{T}:{T+1}], s[{sAl}:{sAl+1}], v[{H+2*i}:{H+2*i+1}] op_sel_hi:[1,0,1]")
                if i == 1:
                    e(f"v_pk_add_f32 v[{T+2}:{T+3}], v[{H}:{H+1}], v[{H+2}:{H+3}]")
                elif i > 1:
                    e(f"v_pk_add_f32 v[{T+2}:{T+3}], v[{T+2}:{T+3}], v[{H+2*i}:{H+2*i+1}]")
        e(f"v_add_f32 v{T+2}, v{T+2}, v{T+3}")
        e(f"v_mul_f32 v{T+2}, 0x3a800000, v{T+2}")
        wave_reduce(T+2, sM)
        for i in range(8):
            e(f"v_pk_add_f32 v[{H+2*i}:{H+2*i+1}], v[{H+2*i}:{H+2*i+1}], s[{sM}:{sM+1}] op_sel_hi:[1,0] neg_lo:[0,1] neg_hi:[0,1]")
            if i == 0:
                e(f"v_pk_mul_f32 v[{T+2}:{T+3}], v[{H}:{H+1}], v[{H}:{H+1}]")
            else:
                e(f"v_pk_fma_f32 v[{T+2}:{T+3}], v[{H+2*i}:{H+2*i+1}], v[{H+2*i}:{H+2*i+1}], v[{T+2}:{T+3}]")
        e(f"v_add_f32 v{T+2}, v{T+2}, v{T+3}")
        wave_reduce(T+2, sR)
        e(f"v_mov_b32 v{T}, 0x3727c5ac")
        e(f"v_mov_b32 v{T+1}, 0x3a800000")
        e(f"v_fma_f32 v{T}, s{sR}, v{T+1}, v{T}")
        e(f"v_rsq_f32 v{T}, v{T}")
        e("s_nop 0")
        for i in range(8):
            e(f"v_pk_mul_f32 v[{H+2*i}:{H+2*i+1}], v[{H+2*i}:{H+2*i+1}], v[{T}:{T+1}] op_sel_hi:[1,0]")
            e(f"v_pk_fma_f32 v[{H+2*i}:{H+2*i+1}], v[{H+2*i}:{H+2*i+1}], v[{GF+2*i}:{GF+2*i+1}], v[{BF+2*i}:{BF+2*i+1}]")
            e(f"v_cvt_pk_bf16_f32 v{X[r]+i}, v{H+2*i}, v{H+2*i+1}")
            if i % 4 == 3:
                c = i // 4
                o = 2048*r + 1024*c - bias
                e(f"global_store_dwordx4 v{vOff}, v[{X[r]+4*c}:{X[r]+4*c+3}], s[14:15] offset:{o} {stflag}")
                nstores += 1
    e("L_end:")
    e("s_endpgm")
    for l in L:
        out += ("" if l.endswith(":") else "    ") + l.rstrip() + "\n"
    acc = (nv + 3)//4*4
    out += f""".section .rodata,"a"
.p2align 6
.amdhsa_kernel {name}
  .amdhsa_next_free_vgpr {nv}
  .amdhsa_next_free_sgpr 32
  .amdhsa_accum_offset {acc}
  .amdhsa_group_segment_fixed_size 0
  .amdhsa_kernarg_size 64
  .amdhsa_user_sgpr_count 2
  .amdhsa_user_sgpr_kernarg_segment_ptr 1
  .amdhsa_system_sgpr_workgroup_id_x 1
  .amdhsa_float_denorm_mode_32 3
.end_amdhsa_kernel
"""
    return out

if __name__ == "__main__":
    ap = argparse.ArgumentParser()
    ap.add_argument("-R", type=int, default=1)
    ap.add_argument("-W", type=int, default=4)
    ap.add_argument("--ld", default="")
    ap.add_argument("--st", default="")
    ap.add_argument("--gb", default="")
    ap.add_argument("-o", default="/dev/stdout")
    a = ap.parse_args()
    open(a.o, "w").write(gen(a.R, a.W, a.ld, a.st, a.gb))
```

```python
import sys
sys.path.insert(0, '.')
import gen0
def variant(src, instr, C):
    i = src.index("kernel:\n") + len("kernel:\n")
    j = src.index("L_end:")
    pre = f"    {instr} s[24:25]\n"
    post = f"""    s_waitcnt vmcnt(0)
    s_add_u32 s24, s24, {C}
L_spin:
    {instr} s[26:27]
    s_waitcnt lgkmcnt(0)
    s_sub_u32 s28, s26, s24
    s_cmp_lt_i32 s28, 0
    s_cbranch_scc1 L_spin
"""
    return src[:i] + pre + src[i:j] + post + src[j:]
src = gen0.gen(1, 4)
for C in (2000, 1000, 700, 500, 300):
    open(f"../var/diag_rt{C}.s", "w").write(variant(src, "s_memrealtime", C))
open(f"../var/diag_cy48000.s", "w").write(variant(src, "s_memtime", 48000))
src = gen0.gen(1, 1)
for C in (2000, 1000):
    open(f"../var/diag_w1_rt{C}.s", "w").write(variant(src, "s_memrealtime", C))
src = gen0.gen(1, 16)
for C in (2000, 1000):
    open(f"../var/diag_w16_rt{C}.s", "w").write(variant(src, "s_memrealtime", C))
src = gen0.gen(1, 4, "", "sc0 sc1")
open(f"../var/diag_sc_rt1000.s", "w").write(variant(src, "s_memrealtime", 1000))
src = gen0.gen(1, 4, "", "nt")
open(f"../var/diag_nt_rt1000.s", "w").write(variant(src, "s_memrealtime", 1000))
src = gen0.gen(4, 4)
open(f"../var/diag_r4w4_rt1000.s", "w").write(variant(src, "s_memrealtime", 1000))
src = gen0.gen(4, 16)
open(f"../var/diag_r4w16_rt1000.s", "w").write(variant(src, "s_memrealtime", 1000))
src = gen0.gen(4, 1)
open(f"../var/diag_r4w1_rt1000.s", "w").write(variant(src, "s_memrealtime", 1000))
```

```python
import sys, math
sys.path.insert(0, '.')
import gen0, stamp
def gen(R=4, W=4, D=2, ld="nt", st="", rowstride=0, lastpol=None, nlast=1, work=0):
    nwg = 4096 // (R*W)
    name = "standalone__deepnorm__sampling_kernel"
    out = gen0.HEADER + f"; @launch grid=({nwg},1,1) block=({64*W},1,1) lds=0\n"
    out += f""".amdgcn_target "amdgcn-amd-amdhsa--gfx950"
.text
.globl {name}
.p2align 8
.type {name},@function
{name}:
"""
    L = []; e = L.append
    e("s_load_dwordx8 s[4:11], s[0:1], 0")
    e("s_load_dwordx4 s[12:15], s[0:1], 32")
    e(f"s_cmp_ge_u32 s2, {nwg}")
    e("s_cbranch_scc1 L_end")
    rb = 2048*R if rowstride == 1 else 2048
    e("v_and_b32 v2, 63, v0")
    e("v_lshlrev_b32 v2, 4, v2")
    e("v_lshrrev_b32 v1, 6, v0")
    e(f"v_mul_u32_u24 v1, {rb}, v1")
    e("v_add_u32 v1, v1, v2")
    e(f"s_mul_i32 s16, s2, {rb*W}")
    e(f"v_add_u32 v1, s16, v1")
    A = 20
    rs = 2048 if rowstride == 1 else 2048*(4096//R)
    for k in range(R):
        e(f"v_add_u32 v{A+k}, {rs*k}, v1")
    X0 = 40
    NB = D + 1
    e("s_waitcnt lgkmcnt(0)")
    q = []
    def load(r):
        x = X0 + 16*(r % NB)
        for (t,c) in [(0,0),(0,1),(1,0),(1,1)]:
            e(f"global_load_dwordx4 v[{x+8*t+4*c}:{x+8*t+4*c+3}], v{A+r}, s[{4+2*t}:{5+2*t}] offset:{1024*c} {ld}")
            q.append(("L", r))
    for r in range(min(D, R)): load(r)
    for r in range(R):
        last = max(i for i,t in enumerate(q) if t == ("L", r))
        e(f"s_waitcnt vmcnt({len(q)-1-last})")
        if r + D < R: load(r + D)
        x = X0 + 16*(r % NB)
        for i in range(8):
            e(f"v_xor_b32 v{x+i}, v{x+i}, v{x+8+i}")
        for i in range(work):
            e(f"v_xor_b32 v{x+(i%8)}, v{x+(i%8)}, v{x+8+(i%8)}")
        pol = st if (lastpol is None or r < R - nlast) else lastpol
        for c in range(2):
            e(f"global_store_dwordx4 v{A+r}, v[{x+4*c}:{x+4*c+3}], s[14:15] offset:{1024*c} {pol}")
            q.append(("S", r))
    e("L_end:")
    e("s_endpgm")
    for l in L:
        out += ("" if l.endswith(":") else "    ") + l.rstrip() + "\n"
    nv = X0 + 16*NB
    out += f""".section .rodata,"a"
.p2align 6
.amdhsa_kernel {name}
  .amdhsa_next_free_vgpr {nv}
  .amdhsa_next_free_sgpr 32
  .amdhsa_accum_offset {(nv+3)//4*4}
  .amdhsa_group_segment_fixed_size 0
  .amdhsa_kernarg_size 64
  .amdhsa_user_sgpr_count 2
  .amdhsa_user_sgpr_kernarg_segment_ptr 1
  .amdhsa_system_sgpr_workgroup_id_x 1
.end_amdhsa_kernel
"""
    return out
pts = [(r"s_waitcnt lgkmcnt\(0\)", "after", 1)] + [(r"s_waitcnt vmcnt", "after", k) for k in (1,2,3,4)]
def emit(nm, stamped=False, **kw):
    s = gen(**kw)
    if stamped:
        s, n = stamp.go(s, kw.get("W", 4), pts)
        nm = "st_" + nm
    open(f"../var/{nm}.s", "w").write(s)
if __name__ == "__main__":
    for (R,W,D) in [(4,4,1),(4,4,2),(2,8,1),(8,2,2),(8,2,3),(4,4,4)]:
        for pn, pol in [("pl",""),("sc1","sc1"),("nt","nt")]:
            emit(f"q_r{R}w{W}d{D}_{pn}", R=R, W=W, D=D, st=pol)
```

```python
import sys, re
def stamp(src, W, points):
    lines = src.split("\n")
    out = []
    n = 0
    seen = {}
    body = False
    for l in lines:
        if l.startswith("standalone") and l.endswith("kernel:"):
            out.append(l); out.append("    s_memrealtime s[40:41]"); n = 1; body = True
            out.append("    s_load_dwordx2 s[38:39], s[0:1], 56")
            out.append("    v_lshrrev_b32 v255, 6, v0")
            continue
        if body:
            for (rx, when, occ) in points:
                if re.search(rx, l):
                    seen[(rx,when,occ)] = seen.get((rx,when,occ), 0) + 1
                    if seen[(rx,when,occ)] == occ and when == "before":
                        out.append(f"    s_memrealtime s[{40+2*n}:{41+2*n}]"); n += 1
        if l.startswith("L_end:"):
            out.append(f"    s_memrealtime s[{40+2*n}:{41+2*n}]"); n += 1
            out.append("    s_waitcnt vmcnt(0)")
            out.append(f"    s_memrealtime s[{40+2*n}:{41+2*n}]"); n += 1
            out.append("    s_getreg_b32 s36, hwreg(HW_REG_XCC_ID)")
            out.append("    s_getreg_b32 s37, hwreg(HW_REG_HW_ID)")
            out.append("    s_waitcnt lgkmcnt(0)")
            out.append(f"    s_mul_i32 s35, s2, {W}")
            out.append("    v_add_u32 v255, s35, v255")
            out.append("    v_lshlrev_b32 v255, 6, v255")
            for k in range(n):
                out.append(f"    v_mov_b32 v{200+k}, s{40+2*k}")
            for k in range(n, 14):
                out.append(f"    v_mov_b32 v{200+k}, 0")
            out.append("    v_mov_b32 v214, s36")
            out.append("    v_mov_b32 v215, s37")
            out.append("    s_mov_b64 exec, 1")
            for k in range(4):
                out.append(f"    global_store_dwordx4 v255, v[{200+4*k}:{203+4*k}], s[38:39] offset:{16*k}")
        out.append(l)
        if body:
            for (rx, when, occ) in points:
                if re.search(rx, l) and seen.get((rx,when,occ), 0) == occ and when == "after":
                    out.append(f"    s_memrealtime s[{40+2*n}:{41+2*n}]"); n += 1
    s = "\n".join(out)
    return s, n
def fix_regs(s, nv_old):
    base = 4
    s = re.sub(r"v\[(2\d\d):(2\d\d)\]", lambda m: f"v[{int(m.group(1))-200+base}:{int(m.group(2))-200+base}]", s)
    s = re.sub(r"v255", "v3", s)
    s = re.sub(r"\bv(2[01]\d)\b", lambda m: f"v{int(m.group(1))-200+base}", s)
    s = re.sub(r"next_free_sgpr \d+", "next_free_sgpr 72", s)
    return s
def go(src, W, points):
    nv = int(re.search(r"next_free_vgpr (\d+)", src).group(1))
    assert nv < 180
    s, n = stamp(src, W, points)
    return fix_regs(s, nv), n
if __name__ == "__main__":
    src = open(sys.argv[1]).read()
    W = int(re.search(r"block=\((\d+)", src).group(1))//64
    pts = [(r"s_waitcnt lgkmcnt\(0\)", "after", 1), (r"s_waitcnt vmcnt", "before", 1), (r"s_waitcnt vmcnt", "after", 1), (r"s_waitcnt vmcnt\(0\)", "after", 1), (r"global_store", "before", 1)]
    s, n = go(src, W, pts)
    open(sys.argv[2], "w").write(s)
    print("stamps", n)
```

```python
import exp6, re
def g(R, W, D, mp, order="xxff"):
    s = exp6.gen(R=R, W=W, D=D, rowstride=(1 if mp == "contig" else 0))
    s = s.replace(".p2align 8\n.type", ".p2align 12\n.p2align 8\n.type")
    if mp == "wgs":
        s = s.replace(f"s_mul_i32 s16, s2, {2048*W}", f"s_mul_i32 s16, s2, {2048*W*R}")
        for k in range(R):
            s = s.replace(f"v_add_u32 v{20+k}, {2048*(4096//R)*k}, v1", f"v_add_u32 v{20+k}, {2048*W*k}, v1")
    if order == "xfxf":
        L = s.split("\n"); out = []; i = 0
        while i < len(L):
            if "global_load" in L[i]:
                a = L[i:i+4]; out += [a[0], a[2], a[1], a[3]]; i += 4
            else: out.append(L[i]); i += 1
        s = "\n".join(out)
    return s
V = [(2,8,1,"str"),(2,8,1,"wgs"),(2,8,1,"str","xfxf"),(4,4,2,"str"),(4,4,2,"wgs"),(4,4,2,"contig"),(4,4,3,"wgs"),(8,2,3,"str"),(8,2,4,"wgs"),(8,2,4,"str"),(2,4,1,"str"),(1,16,1,"str"),(4,8,1,"wgs"),(2,8,2,"str")]
for v in V:
    open("../var/s_r%dw%dd%d_%s.s" % (v[0], v[1], v[2], "_".join(v[3:])), "w").write(g(*v))
```
